```python
import torch

def _softmax(x, axis=-1):
    return torch.softmax(x, dim=axis)
def _gelu(x):
    return torch.nn.functional.gelu(x, approximate="tanh")
def _silu(x):
    return torch.nn.functional.silu(x)
def _sigmoid(x):
    return torch.sigmoid(x)
def _layernorm(x, axis=-1, eps=1e-5):
    m = x.mean(dim=axis, keepdim=True)
    v = x.var(dim=axis, keepdim=True, unbiased=False)
    return (x - m) / torch.sqrt(v + eps)
def _scatter_add(tgt, idx, src, axis=0):
    return tgt.clone().index_add_(axis, idx, src)
def _segment_sum(src, seg, n):
    out = torch.zeros((n,) + src.shape[1:], dtype=src.dtype)
    return out.index_add_(0, seg, src)
def _pad(x, pw):
    flat = tuple(v for pair in reversed(pw) for v in pair)
    return torch.nn.functional.pad(x, flat)

kernel_name = 'standalone__mha_softmax__near_ridge'

def setup_inputs():

    _w = (lambda a: (lambda t: t.to(torch.bfloat16) if t.is_floating_point() else t)(torch.as_tensor(a)))
    B, H, Sq, Sk, D = 8, 16, 1312, 512, 256
    return {
        "q": _w((lambda *s: torch.randn(*s, dtype=torch.bfloat16) * 0.8)(B, H, Sq, D)),
        "k": _w((lambda *s: torch.randn(*s, dtype=torch.bfloat16) * 0.8)(B, H, Sk, D)),
        "v": _w((lambda *s: torch.randn(*s, dtype=torch.bfloat16) * 0.05)(B, H, Sk, D)),
    }

def reference(q, k, v):
    scale = q.shape[-1] ** -0.5
    scores = torch.einsum("bhqd,bhkd->bhqk", q, k) * scale
    p = _softmax(scores, axis=-1)
    return torch.einsum("bhqk,bhkd->bhqd", p, v)
```

```python
import sys, argparse, struct, copy
ap = argparse.ArgumentParser()
ap.add_argument("--nbs", default="4")
ap.add_argument("--stamps", type=int, default=0)
ap.add_argument("--qnt", default="")
ap.add_argument("--kvnt", default="")
ap.add_argument("--ont", default="")
ap.add_argument("--thresh", type=float, default=float(2**20))
args = ap.parse_args()

KNAME = "standalone__mha_softmax__near_ridge_kernel"
def f2u(f): return struct.unpack("<I", struct.pack("<f", f))[0]

def Qr(qb, t): b = (qb*8+t)*4; return f"a[{b}:{b+3}]"
def Fr(i): b = 128+4*(i % 4); return f"a[{b}:{b+3}]"
def Fh(i, h): b = 128+4*(i % 4)+2*h; return f"a[{b}:{b+1}]"
NVD = 9
V_S = 48
V_O = 112
def Sreg(buf, qb, e): return V_S + buf*32 + qb*8 + e
def Sq(buf, qb, kb): b = Sreg(buf, qb, kb*4); return f"v[{b}:{b+3}]"
def Oloc(qb, d):
    if d < NVD: return ("v", V_O + (d*4+qb)*4)
    return ("a", 144 + ((d-NVD)*4+qb)*4)
def Oq(qb, d): k, b = Oloc(qb, d); return f"{k}[{b}:{b+3}]"
V_KA = 1
V_VA = 5
V_DMA = 13
V_MC = 14
V_L = 18
V_LT = 22
V_QO = 26
V_OO = 27
V_T = 28
V_X = 32
S_Q, S_K, S_V, S_O = 8, 12, 16, 20
S_C = 24; S_TH = 25
S_KOFF = 26; S_VOFF = 27; S_HNEXT = 28; S_KCUR = 29
S_KW = 30; S_VW = 31
S_KR = 32; S_VR = 33
S_DK = 34; S_DV = 35
S_LOOP = 36; S_TILE = 37; S_W = 38; S_RET = 39
S_T0, S_T1, S_T2, S_T3 = 40, 41, 42, 43
S_QP = 44
S_OP = 46
S_CU = 48; S_XCD = 49; S_NB = 50
S_KWEND = 51; S_VWEND = 52
S_WS = 56
S_ST = 60
LDS_K = 0; LDS_V = 49152; SLOT = 16384; RING = 3
LDS_TOTAL = 98304

class Op:
    def __init__(s, txt, cost=1, deps=(), earliest=0):
        s.txt = txt; s.cost = cost; s.deps = list(deps); s.idx = None; s.earliest = earliest

class G:
    def __init__(s):
        s.o = []; s.n = 0; s.lg = []; s.vm = []; s.rec = None; s.force = None
    def c(s, t): s.o.append("; " + t)
    def lab(s, t): s.o.append(t + ":")
    def raw(s, t): s.o.append(t)
    def e(s, t):
        for x in t.split("\n"):
            x = x.strip()
            if not x: continue
            s.o.append("    " + x)
            if x.startswith("s_nop"): s.n += int(x.split()[1]) + 1
            else: s.n += 1
    def ds(s, t, tag): s.e(t); s.lg.append(tag)
    def vmem(s, t, tag): s.e(t); s.vm.append(tag)
    def _cnt(s, q, tag):
        idx = [i for i, x in enumerate(q) if x == tag]
        if not idx: return None
        return len(q) - 1 - idx[-1]
    def wait_lg(s, tag):
        n = s._cnt(s.lg, tag)
        if n is None: return False
        assert n <= 15
        s.e(f"s_waitcnt lgkmcnt({n})"); s.lg = s.lg[len(s.lg)-n:] if n else []
        return True
    def wait_vm(s, tag):
        n = s._cnt(s.vm, tag)
        if s.rec is not None: s.rec.append(n)
        if s.force is not None:
            n = s.force.pop(0)
            if n is not None and n > len(s.vm):
                s.e(f"s_waitcnt vmcnt({n})"); return True
        if n is None: return False
        n = min(n, 63)
        s.e(f"s_waitcnt vmcnt({n})"); s.vm = s.vm[len(s.vm)-n:] if n else []
        return True
    def wait_all(s):
        s.e("s_waitcnt vmcnt(0) lgkmcnt(0)"); s.vm = []; s.lg = []
    def ready(s, op, gap):
        if gap < op.earliest: return False
        for d, ws in op.deps:
            if d.idx is None or s.n - d.idx - 1 < ws: return False
        return True
    def emit_op(s, op):
        op.idx = s.n; s.e(op.txt)
    def fill(s, q, slots, gap):
        while slots > 0 and q:
            pick = None
            win = q[:24]
            if slots >= 2:
                for op in win:
                    if op.cost == 2 and s.ready(op, gap): pick = op; break
            if pick is None:
                for op in win:
                    if op.cost == 1 and s.ready(op, gap): pick = op; break
            if pick is None: return
            q.remove(pick); s.emit_op(pick); slots -= pick.cost
    def drain(s, q):
        while q:
            pick = None
            for op in q[:24]:
                if s.ready(op, 10**9): pick = op; break
            if pick is None: s.e("s_nop 0"); continue
            q.remove(pick); s.emit_op(pick)

g = G()

def stamp(i):
    if not args.stamps: return
    g.e(f"s_memtime s[{S_ST}:{S_ST+1}]\ns_memrealtime s[{S_ST+2}:{S_ST+3}]\ns_waitcnt lgkmcnt(0)")
    g.lg = []
    for k in range(4): g.e(f"v_mov_b32 v{V_X+k}, s{S_ST+k}")
    g.e(f"s_lshl_b32 s{S_T0}, s2, 2\ns_add_u32 s{S_T0}, s{S_T0}, s{S_W}\ns_lshl_b32 s{S_T0}, s{S_T0}, 9")
    g.e(f"s_mul_i32 s{S_T1}, s{S_TILE}, 128\ns_add_u32 s{S_T0}, s{S_T0}, s{S_T1}\ns_add_u32 s{S_T0}, s{S_T0}, {i*16}")
    g.e(f"v_mov_b32 v{V_X+4}, 0")
    g.vmem(f"buffer_store_dwordx4 v[{V_X}:{V_X+3}], v{V_X+4}, s[{S_WS}:{S_WS+3}], s{S_T0} offen", "stamp")
    g.e("s_nop 1")

def frag_reads(kind, i):
    if kind == "QK":
        kb, t = i // 8, i % 8
        return [(f"ds_read_b128 {Fr(i)}, v{V_KA + t % 4} offset:{kb*2048 + (t//4)*256}", ("F", i % 4))]
    else:
        return [(f"ds_read_b64_tr_b16 {Fh(i, kb)}, v{V_VA + i % 8} offset:{kb*2048 + (i//8)*256}", ("F", i % 4)) for kb in range(2)]

def softmax_ops(NB, buf, mcdeps=None, ltdeps=None, e_kb0=0, e_kb1=8, check=True):
    ops = []
    last = []
    for qb in range(NB):
        F = []; E = []
        for e in range(8):
            r = Sreg(buf, qb, e)
            deps = [(mcdeps[qb], 1)] if mcdeps else []
            F.append(Op(f"v_fma_f32 v{r}, v{r}, s{S_C}, -v{V_MC+qb}", 1, deps, e_kb0 if e < 4 else e_kb1))
            E.append(Op(f"v_exp_f32 v{r}, v{r}", 2, [(F[e], 1)]))
        A = []
        lt = V_LT + qb
        r = lambda e: Sreg(buf, qb, e)
        d0 = [(E[0], 1), (E[1], 1)] + ([(ltdeps[qb], 0)] if ltdeps else [])
        A.append(Op(f"v_add_f32 v{lt}, v{r(0)}, v{r(1)}", 1, d0))
        for e in range(2, 8):
            A.append(Op(f"v_add_f32 v{lt}, v{lt}, v{r(e)}", 1, [(E[e], 1), (A[-1], 1)]))
        C = []
        def add_of(e): return A[0] if e < 2 else A[e-1]
        for k in range(4):
            deps = [(E[2*k], 1), (E[2*k+1], 1), (add_of(k), 0)]
            if k > 0: deps.append((C[k-1], 0))
            C.append(Op(f"v_cvt_pk_bf16_f32 v{r(k)}, v{r(2*k)}, v{r(2*k+1)}", 1, deps))
        seq = F[0:4] + [E[0], E[1]] + F[4:8] + [E[2], E[3], A[0], E[4], A[1], C[0], E[5], A[2], C[1], E[6], A[3], E[7], A[4], C[2], A[5], A[6], C[3]]
        ops += seq
        last.append((A[-1], C[-1]))
    cmp_op = None
    if check:
        t = V_T
        lts = [f"v{V_LT+q}" for q in range(NB)]
        deps = [(a, 1) for a, _ in last]
        if NB == 4:
            m1 = Op(f"v_max3_f32 v{t}, {lts[0]}, {lts[1]}, {lts[2]}", 1, deps[:3])
            m2 = Op(f"v_max_f32 v{t}, v{t}, {lts[3]}", 1, [(m1, 1), deps[3]])
            ops += [m1, m2]; mm = m2
        elif NB == 3:
            mm = Op(f"v_max3_f32 v{t}, {lts[0]}, {lts[1]}, {lts[2]}", 1, deps); ops.append(mm)
        else:
            mm = Op(f"v_max_f32 v{t}, {lts[0]}, {lts[1]}", 1, deps); ops.append(mm)
        cmp_op = Op(f"v_cmp_nge_f32 vcc, s{S_TH}, v{t}", 1, [(mm, 1)] + [(c, 0) for _, c in last])
        ops.append(cmp_op)
    return ops, last, cmp_op

def ladd_ops(NB):
    return [Op(f"v_add_f32 v{V_L+q}, v{V_L+q}, v{V_LT+q}", 1) for q in range(NB)]

def xlane(opname, reg, tmp, first_dep):
    ops = []
    prev = first_dep
    for sw in ("v_permlane32_swap_b32", "v_permlane16_swap_b32"):
        mv = Op(f"v_mov_b32 v{tmp}, v{reg}", 1, [(prev, 1)])
        p = Op(f"{sw} v{reg}, v{tmp}", 1, [(mv, 2), (prev, 2)])
        m = Op(f"{opname} v{reg}, v{reg}, v{tmp}", 1, [(p, 1)])
        ops += [mv, p, m]; prev = m
    return ops

def max_ops(NB, buf, dst, e0=0, e1=8):
    allops = []; last = []
    for qb in range(NB):
        r = lambda e: Sreg(buf, qb, e)
        t = dst + qb
        a = Op(f"v_max3_f32 v{t}, v{r(0)}, v{r(1)}, v{r(2)}", 1, [], e0)
        b = Op(f"v_max3_f32 v{t}, v{t}, v{r(3)}, v{r(4)}", 1, [(a, 1)], e1)
        c = Op(f"v_max3_f32 v{t}, v{t}, v{r(5)}, v{r(6)}", 1, [(b, 1)], e1)
        d = Op(f"v_max_f32 v{t}, v{t}, v{r(7)}", 1, [(c, 1)], e1)
        x = xlane("v_max_f32", t, V_X + 8 + qb, d)
        allops.append([a, b, c, d] + x); last.append(x[-1])
    ops = []
    for k in range(len(allops[0])):
        for qb in range(NB): ops.append(allops[qb][k])
    return ops, last

def adv_ops(kind):
    if kind == "K": return [Op(f"v_add_u32 v{V_KA+i}, s{S_DK}, v{V_KA+i}", 1) for i in range(4)]
    return [Op(f"v_add_u32 v{V_VA+i}, s{S_DV}, v{V_VA+i}", 1) for i in range(8)]

def dma_items(kind):
    off, w, srd, wend, base = (S_KOFF, S_KW, S_K, S_KWEND, LDS_K) if kind == "K" else (S_VOFF, S_VW, S_V, S_VWEND, LDS_V)
    pol = (args.kvnt + " ") if args.kvnt else ""
    pre = [f"s_mov_b32 m0, s{w}"]
    d = [f"buffer_load_dwordx4 v{V_DMA}, s[{srd}:{srd+3}], s{off} offen offset:{i*1024} {pol}lds" for i in range(4)]
    post = [f"s_add_u32 s{off}, s{off}, {SLOT}", f"s_and_b32 s{S_T0}, s{off}, 0x3ffff", f"s_cselect_b32 s{off}, s{off}, s{S_HNEXT}",
            f"s_add_u32 s{w}, s{w}, {SLOT}", f"s_cmp_eq_u32 s{w}, s{wend}", f"s_cselect_b32 s{S_T1}, {RING*SLOT}, 0", f"s_sub_u32 s{w}, s{w}, s{S_T1}"]
    return pre, d, post

def rd_adv_scalar(kind):
    r, dl = (S_KR, S_DK) if kind == "K" else (S_VR, S_DV)
    return [f"s_cmp_eq_u32 s{r}, {RING-1}", f"s_cselect_b32 s{dl}, {(-(RING-1)*SLOT) & 0xffffffff:#x}, s{S_T3}", f"s_add_u32 s{r}, s{r}, 1", f"s_cmp_eq_u32 s{r}, {RING}", f"s_cselect_b32 s{r}, 0, s{r}"]

cnt = {"K": 0, "V": 0}
need = {"K": 0, "V": 0}

def phase(NB, kind, buf, nxt, q, dma, first=False, branch=None, prefetched=True, extra_sc=()):
    n = 16 * NB
    sc = [[] for _ in range(n)]; ld = [[] for _ in range(n)]; full = [False]*n
    mine = "K" if kind == "QK" else "V"
    if not prefetched:
        for i in range(3):
            for t, tag in frag_reads(kind, i): g.ds(t, tag)
        g.wait_lg(("F", 0))
    for i in range(16):
        j = i + 3
        if j < 16: rd = frag_reads(kind, j)
        elif nxt: rd = frag_reads(nxt, j - 16)
        else: rd = []
        for k, (t, tag) in enumerate(rd):
            ld[NB*i + (k if NB > 1 else 0)].append((t, tag))
        if i + 1 < 16 or nxt:
            sc[NB*i + NB - 1].append(("wlg", ("F", (i+1) % 4)))
    free_sc = [x for x in range(n) if not sc[x]]
    nk = None if nxt is None else ("K" if nxt == "QK" else "V")
    pre, d, post = dma_items(dma)
    seq = []
    if nk: seq.append(("wvm", nk))
    seq.append(("txt", "s_barrier"))
    seq.append(("txt", pre[0]))
    pos = 0
    for it in seq:
        sc[free_sc[pos]].append(it); pos += 1
    after = free_sc[pos-1]
    cand = [x for x in range(after+1, n) if not sc[x] and not ld[x]]
    if len(cand) < 4: cand = [x for x in range(after+1, n) if not ld[x]]
    if len(cand) < 4: cand = [x for x in range(after+1, n) if not sc[x]]
    step = max(1, min(len(cand)//5, 3))
    dg = [cand[k*step] for k in range(4)]
    for k, x in enumerate(dg):
        ld[x].insert(0, ("DMA", d[k], dma)); full[x] = True
    free_sc = [x for x in range(dg[-1]+1, n) if not sc[x] and not full[x]]
    rest = post + list(extra_sc)
    early = [x for x in range(after+1, dg[-1]) if not sc[x] and not full[x]]
    adv_s = rd_adv_scalar(mine)
    pool = early + free_sc
    items = adv_s + rest
    assert len(pool) >= len(items), (len(pool), len(items))
    k = 0
    for it in adv_s:
        sc[pool[k]].append(("txt", it)); lastadv = pool[k]; k += 1
    pool2 = [x for x in pool[k:] if x > dg[-1]]
    assert len(pool2) >= len(rest), (len(pool2), len(rest))
    for it, x in zip(rest, pool2): sc[x].append(("txt", it))
    used_sc = pool2[len(rest)-1]
    lastread = NB*12 + (1 if kind == "PV" else 0)
    adv = adv_ops(mine)
    same_next = (nxt == kind)
    if same_next:
        pass
    for a in adv: a.earliest = max(lastread + 1, lastadv + 1)
    advq = list(adv)
    br_done = branch is None
    for x in range(n):
        i, qb = x // NB, x % NB
        if kind == "QK":
            kb, t = i // 8, i % 8
            C = "0" if t == 0 else Sq(buf, qb, kb)
            g.e(f"v_mfma_f32_16x16x32_bf16 {Sq(buf, qb, kb)}, {Fr(i)}, {Qr(qb, t)}, {C}")
        else:
            C = "0" if first else Oq(qb, i)
            g.e(f"v_mfma_f32_16x16x32_bf16 {Oq(qb, i)}, {Fr(i)}, {Sq(buf, qb, 0)}, {C}")
        if same_next and x == NB*13:
            g.drain(advq)
        for it in sc[x]:
            if it[0] == "wlg": g.wait_lg(it[1])
            elif it[0] == "wvm":
                g.wait_vm((it[1], need[it[1]])); need[it[1]] += 1
            else: g.e(it[1])
        if not br_done and not sc[x] and not full[x] and branch[0].idx is not None and x > used_sc:
            g.e(f"s_cbranch_vccnz {branch[1]}"); g.lab(branch[2]); br_done = True
        slots = 2
        for it in ld[x]:
            if it[0] == "DMA":
                g.vmem(it[1], (it[2], cnt[it[2]])); slots -= 2
            else:
                g.ds(it[0], it[1]); slots -= 1
        if advq and x >= advq[0].earliest:
            before = len(advq); g.fill(advq, slots, x); slots -= before - len(advq)
        if slots > 0: g.fill(q, slots, x)
    g.drain(advq)
    cnt[dma] += 1
    return br_done

rare_sites = {}
def rare_block(NB, buf):
    L = f"L_rare_{NB}_{buf}"
    g.lab(L)
    g.c("recompute S from global K, true running max, rescale")
    t0, t1 = V_T+1, V_T+2
    g.e(f"v_mbcnt_lo_u32_b32 v{t0}, -1, 0\nv_mbcnt_hi_u32_b32 v{t0}, -1, v{t0}")
    g.e(f"v_lshrrev_b32 v{t1}, 4, v{t0}\nv_lshlrev_b32 v{t1}, 4, v{t1}")
    g.e(f"v_and_b32 v{V_T+3}, 6, v{t0}\nv_lshlrev_b32 v{V_T+3}, 11, v{V_T+3}\nv_add_u32 v{t1}, v{t1}, v{V_T+3}")
    g.e(f"v_and_b32 v{V_T+3}, 8, v{t0}\nv_lshlrev_b32 v{V_T+3}, 7, v{V_T+3}\nv_add_u32 v{t1}, v{t1}, v{V_T+3}")
    g.e(f"v_and_b32 v{V_T+3}, 1, v{t0}\nv_lshlrev_b32 v{V_T+3}, 9, v{V_T+3}\nv_add_u32 v{t1}, v{t1}, v{V_T+3}")
    for grp in range(4):
        for k in range(4):
            i = grp*4+k; kb, t = i//8, i % 8
            g.e(f"buffer_load_dwordx4 v[{V_X+4*k}:{V_X+4*k+3}], v{t1}, s[{S_K}:{S_K+3}], s{S_KCUR} offen offset:{kb*2048+t*64}")
        g.e("s_waitcnt vmcnt(0)")
        for k in range(4):
            i = grp*4+k; kb, t = i//8, i % 8
            for qb in range(NB):
                C = "0" if t == 0 else Sq(buf, qb, kb)
                g.e(f"v_mfma_f32_16x16x32_bf16 {Sq(buf, qb, kb)}, v[{V_X+4*k}:{V_X+4*k+3}], {Qr(qb, t)}, {C}")
        g.e("s_nop 7")
    g.e("s_nop 7")
    ops, last = max_ops(NB, buf, V_X, 0, 0)
    g.drain(ops)
    for qb in range(NB):
        g.e(f"v_mul_f32 v{V_X+qb}, s{S_C}, v{V_X+qb}")
    for qb in range(NB):
        g.e(f"v_max_f32 v{V_X+qb}, v{V_X+qb}, v{V_MC+qb}")
    for qb in range(NB):
        g.e(f"v_sub_f32 v{V_X+4+qb}, v{V_MC+qb}, v{V_X+qb}")
    for qb in range(NB):
        g.e(f"v_exp_f32 v{V_X+4+qb}, v{V_X+4+qb}")
    for qb in range(NB):
        g.e(f"v_mov_b32 v{V_MC+qb}, v{V_X+qb}")
    for qb in range(NB):
        g.e(f"v_mul_f32 v{V_L+qb}, v{V_L+qb}, v{V_X+4+qb}")
    for qb in range(NB):
        f = V_X+4+qb
        for d in range(16):
            k, b = Oloc(qb, d)
            if k == "v":
                for r in range(4): g.e(f"v_mul_f32 v{b+r}, v{b+r}, v{f}")
            else:
                for r in range(4): g.e(f"v_accvgpr_read_b32 v{V_X+8+r}, a{b+r}")
                for r in range(4): g.e(f"v_mul_f32 v{V_X+8+r}, v{V_X+8+r}, v{f}")
                for r in range(4): g.e(f"v_accvgpr_write_b32 a{b+r}, v{V_X+8+r}")
    ops, last, _ = softmax_ops(NB, buf, check=False, e_kb1=0)
    g.drain(ops)
    g.e("s_nop 1")
    sites = rare_sites[(NB, buf)]
    for k, (stub, ret) in enumerate(sites[:-1]):
        g.e(f"s_cmp_eq_u32 s{S_RET}, {k}\ns_cbranch_scc1 {ret}")
    g.e(f"s_branch {sites[-1][1]}")
    for k, (stub, ret) in enumerate(sites):
        g.lab(stub)
        g.e(f"s_mov_b32 s{S_RET}, {k}\ns_branch {L}")

def site(NB, buf):
    l = rare_sites.setdefault((NB, buf), [])
    k = len(l)
    st = (f"L_rs_{NB}_{buf}_{k}", f"L_rr_{NB}_{buf}_{k}")
    l.append(st).__class__
    return st

def tile_code(NB):
    g.lab(f"L_tile_{NB}")
    pol = (" " + args.qnt) if args.qnt else ""
    for qb in range(NB):
        g.e(f"s_mov_b32 s{S_T0}, {qb*64*512}")
        for t in range(8):
            g.vmem(f"buffer_load_dwordx4 {Qr(qb, t)}, v{V_QO}, s[{S_Q}:{S_Q+3}], s{S_T0} offen offset:{t*64}{pol}", "Q")
    for qb in range(NB): g.e(f"v_mov_b32 v{V_L+qb}, 0")
    g.wait_all()
    need["K"] += 1
    g.e("s_barrier")
    stamp(1)
    phase(NB, "QK", 0, "QK", [], "V", prefetched=False)
    mops, mlast = max_ops(NB, 0, V_MC, 0, 8)
    mul = [Op(f"v_mul_f32 v{V_MC+q}, s{S_C}, v{V_MC+q}", 1, [(mlast[q], 1)]) for q in range(NB)]
    sops, last, _ = softmax_ops(NB, 0, mcdeps=mul, check=False)
    q = mops + mul + sops
    phase(NB, "QK", 1, "PV", q, "K")
    g.drain(q); g.e("s_nop 1")
    kc = [f"s_add_u32 s{S_KCUR}, s{S_KCUR}, {SLOT}"]
    def sm(buf):
        la = ladd_ops(NB)
        sops, last, cmp_op = softmax_ops(NB, buf, ltdeps=la)
        return la + sops, cmp_op
    q, cmp_op = sm(1)
    phase(NB, "PV", 0, "QK", q, "K", first=True, extra_sc=kc + [f"s_mov_b32 s{S_LOOP}, 7"])
    split = len(q)
    g.raw(".p2align 4")
    g.lab(f"L_loop_{NB}")
    def rel(vm): return [(x[0], x[1]-cnt[x[0]]) if isinstance(x, tuple) else x for x in vm]
    def body_fn(q, cmp_op):
        for body in range(2):
            buf = 1 - body
            st = site(NB, buf)
            ok = phase(NB, "QK", 1-buf, "PV", q, "V", branch=(cmp_op, st[0], st[1]))
            assert not q, ("softmax does not fit", len(q))
            if not ok:
                g.e(f"s_cbranch_vccnz {st[0]}"); g.lab(st[1])
            g.e("s_nop 0") if g.n - cmp_op.idx < 3 else None
            q, cmp_op = sm(1-buf)
            ex = list(kc)
            if body == 1: ex += [f"s_sub_u32 s{S_LOOP}, s{S_LOOP}, 1"]
            phase(NB, "PV", buf, "QK", q, "K", extra_sc=ex)
            assert len(q) == split, (len(q), split)
        g.e(f"s_cmp_lg_u32 s{S_LOOP}, 0\ns_cbranch_scc1 L_loop_{NB}")
        return q, cmp_op
    snap = (len(g.o), g.n, list(g.lg), list(g.vm), dict(cnt), dict(need), copy.deepcopy(rare_sites))
    qa, ca = copy.deepcopy((q, cmp_op))
    g.rec = []; qa, ca = body_fn(qa, ca); ra = g.rec; e1 = rel(g.vm); ta = g.o[snap[0]:]
    assert g.lg == snap[2]
    mark = len(g.o)
    g.rec = []; qa, ca = body_fn(qa, ca); rb = g.rec; e2 = rel(g.vm); tb_ = g.o[mark:]
    assert e1 == e2
    strip = lambda t: [x for x in t if "vmcnt" not in x and "L_r" not in x]
    assert strip(ta) == strip(tb_), "loop body differs between first trip and steady state"
    g.rec = None
    del g.o[snap[0]:]; g.n = snap[1]; g.lg = list(snap[2]); g.vm = list(snap[3]); cnt.update(snap[4]); need.update(snap[5])
    rare_sites.clear(); rare_sites.update(snap[6])
    g.force = [min([x for x in (a_, b_) if x is not None], default=None) for a_, b_ in zip(ra, rb)]
    q, cmp_op = body_fn(q, cmp_op)
    assert not g.force
    g.force = None
    g.vm = [(x[0], x[1]+cnt[x[0]]) if isinstance(x, tuple) else x for x in e1]
    need["K"] -= 1
    g.drain(q)
    st = site(NB, 1)
    g.wait_vm(("V", need["V"])); need["V"] += 1
    g.e("s_barrier")
    g.e(f"s_cbranch_vccnz {st[0]}"); g.lab(st[1])
    g.e("s_waitcnt lgkmcnt(0)"); g.lg = []
    la = ladd_ops(NB)
    q = list(la)
    xs = []
    for qb in range(NB):
        x = xlane("v_add_f32", V_L+qb, V_X+8+qb, la[qb])
        x.append(Op(f"v_rcp_f32 v{V_L+qb}, v{V_L+qb}", 2, [(x[-1], 1)]))
        xs.append(x)
    for k in range(len(xs[0])):
        for qb in range(NB): q.append(xs[qb][k])
    phase(NB, "PV", 1, None, q, "V", prefetched=False)
    g.drain(q)
    stamp(2)
    g.e("s_nop 7")
    pol = (" " + args.ont) if args.ont else ""
    k = 0
    for qb in range(NB):
        g.e(f"s_mov_b32 s{S_T0}, {qb*64*512}")
        for u in range(8):
            tb = V_S + (k % 8)*8
            k += 1
            src = []
            for h in range(2):
                kk, b = Oloc(qb, 2*u+h)
                for r in range(4):
                    if kk == "a":
                        g.e(f"v_accvgpr_read_b32 v{tb+4*h+r}, a{b+r}"); src.append(tb+4*h+r)
                    else: src.append(b+r)
            for j in range(8): g.e(f"v_mul_f32 v{tb+j}, v{src[j]}, v{V_L+qb}")
            for j in range(4): g.e(f"v_cvt_pk_bf16_f32 v{tb+j}, v{tb+2*j}, v{tb+2*j+1}")
            g.e("s_nop 1")
            g.e(f"v_permlane16_swap_b32 v{tb}, v{tb+2}\nv_permlane16_swap_b32 v{tb+1}, v{tb+3}")
            g.vmem(f"buffer_store_dwordx4 v[{tb}:{tb+3}], v{V_OO}, s[{S_O}:{S_O+3}], s{S_T0} offen offset:{u*64}{pol}", "O")
    stamp(3)
    g.e("s_branch L_next")

NBS = [int(x) for x in args.nbs.split(",")]
g.raw(f"; @launch grid=(256,1,1) block=(256,1,1) lds={LDS_TOTAL}")
g.raw('.amdgcn_target "amdgcn-amd-amdhsa--gfx950"\n.text')
g.raw(f".globl {KNAME}\n.p2align 8\n.type {KNAME},@function\n{KNAME}:")
g.e("s_cmp_ge_u32 s2, 256\ns_cbranch_scc1 L_end")
g.e(f"s_load_dwordx2 s[{S_QP}:{S_QP+1}], s[0:1], 0")
g.e(f"s_load_dwordx2 s[{S_K}:{S_K+1}], s[0:1], 8")
g.e(f"s_load_dwordx2 s[{S_V}:{S_V+1}], s[0:1], 16")
g.e(f"s_load_dwordx2 s[{S_OP}:{S_OP+1}], s[0:1], 24")
if args.stamps: g.e(f"s_load_dwordx2 s[{S_WS}:{S_WS+1}], s[0:1], 40")
g.e(f"v_lshrrev_b32 v{V_T}, 6, v0\nv_and_b32 v0, 63, v0")
g.e(f"v_readfirstlane_b32 s{S_W}, v{V_T}")
g.e(f"s_and_b32 s{S_XCD}, s2, 7\ns_lshr_b32 s{S_CU}, s2, 3")
g.e(f"s_mov_b32 s{S_C}, {f2u(1.4426950408889634/16):#x}\ns_mov_b32 s{S_TH}, {f2u(args.thresh):#x}")
g.e(f"s_mov_b32 s{S_T3}, {SLOT}")
a, b, c2, d = V_X, V_X+1, V_X+2, V_X+3
def rho512(dst, m, tmp):
    g.e(f"v_and_b32 v{dst}, 6, v{m}\nv_lshlrev_b32 v{dst}, 11, v{dst}")
    g.e(f"v_and_b32 v{tmp}, 8, v{m}\nv_lshlrev_b32 v{tmp}, 7, v{tmp}\nv_add_u32 v{dst}, v{dst}, v{tmp}")
    g.e(f"v_and_b32 v{tmp}, 1, v{m}\nv_lshlrev_b32 v{tmp}, 9, v{tmp}\nv_add_u32 v{dst}, v{dst}, v{tmp}")
g.e(f"v_and_b32 v{a}, 15, v0")
rho512(b, a, c2)
g.e(f"v_and_b32 v{c2}, 7, v0\nv_lshlrev_b32 v{c2}, 1, v{c2}")
g.e(f"v_lshrrev_b32 v{d}, 4, v0")
for t in range(4):
    g.e(f"v_add_u32 v{V_KA+t}, {4*t}, v{d}\nv_xor_b32 v{V_KA+t}, v{V_KA+t}, v{c2}\nv_lshlrev_b32 v{V_KA+t}, 4, v{V_KA+t}\nv_add_u32 v{V_KA+t}, v{V_KA+t}, v{b}")
    if LDS_K: g.e(f"v_add_u32 v{V_KA+t}, {LDS_K}, v{V_KA+t}")
g.e(f"v_lshrrev_b32 v{a}, 2, v0")
rho512(b, a, c2)
g.e(f"v_and_b32 v{c2}, 3, v0\nv_lshlrev_b32 v{c2}, 3, v{c2}\nv_add_u32 v{b}, v{b}, v{c2}\nv_add_u32 v{b}, {LDS_V}, v{b}")
g.e(f"v_and_b32 v{c2}, 7, v{a}")
for dl in range(8):
    g.e(f"v_xor_b32 v{V_VA+dl}, {dl}, v{c2}\nv_lshlrev_b32 v{V_VA+dl}, 5, v{V_VA+dl}\nv_add_u32 v{V_VA+dl}, v{V_VA+dl}, v{b}")
g.e(f"v_lshrrev_b32 v{a}, 5, v0")
g.e(f"s_lshl_b32 s{S_T0}, s{S_W}, 1\nv_add_u32 v{b}, s{S_T0}, v{a}\nv_lshlrev_b32 v{b}, 1, v{b}")
g.e(f"v_and_b32 v{c2}, 31, v0\nv_xor_b32 v{c2}, v{c2}, v{b}\nv_lshlrev_b32 v{c2}, 4, v{c2}")
g.e(f"v_lshlrev_b32 v{a}, 9, v{a}\nv_add_u32 v{V_DMA}, v{a}, v{c2}")
g.e(f"s_lshl_b32 s{S_T0}, s{S_W}, 12\nv_add_u32 v{V_DMA}, s{S_T0}, v{V_DMA}")
g.e(f"v_and_b32 v{a}, 15, v0\nv_lshlrev_b32 v{a}, 9, v{a}\ns_lshl_b32 s{S_T1}, s{S_W}, 13\nv_add_u32 v{a}, s{S_T1}, v{a}")
g.e(f"v_lshrrev_b32 v{b}, 4, v0\nv_lshlrev_b32 v{b}, 4, v{b}\nv_add_u32 v{V_QO}, v{a}, v{b}")
g.e(f"v_and_b32 v{b}, 16, v0\nv_lshlrev_b32 v{b}, 1, v{b}\nv_add_u32 v{V_OO}, v{a}, v{b}")
g.e(f"v_and_b32 v{b}, 32, v0\nv_lshrrev_b32 v{b}, 1, v{b}\nv_add_u32 v{V_OO}, v{V_OO}, v{b}")
g.e(f"s_add_u32 s{S_KW}, s{S_T0}, {LDS_K}\ns_add_u32 s{S_VW}, s{S_T0}, {LDS_V}")
g.e(f"s_add_u32 s{S_KWEND}, s{S_KW}, {RING*SLOT}\ns_add_u32 s{S_VWEND}, s{S_VW}, {RING*SLOT}")
g.e(f"s_mov_b32 s{S_KR}, 0\ns_mov_b32 s{S_VR}, 0\ns_mov_b32 s{S_TILE}, 0")
g.e("s_waitcnt lgkmcnt(0)")
for srd in (S_K, S_V):
    g.e(f"s_mov_b32 s{srd+2}, {128*512*512}\ns_mov_b32 s{srd+3}, 0x20000")
g.e(f"s_mov_b32 s{S_Q+3}, 0x20000\ns_mov_b32 s{S_O+3}, 0x20000")
if args.stamps: g.e(f"s_mov_b32 s{S_WS+2}, 0x1000000\ns_mov_b32 s{S_WS+3}, 0x20000")
stamp(0)
def head_of(tile_sgpr_or_imm, dst, ty):
    g.e(f"s_lshl_b32 s{S_T0}, {tile_sgpr_or_imm}, 5\ns_add_u32 s{S_T0}, s{S_T0}, s{S_CU}")
    g.e(f"s_mul_i32 s{dst}, s{S_T0}, 43\ns_lshr_b32 s{dst}, s{dst}, 8")
    g.e(f"s_mul_i32 s{ty}, s{dst}, 6\ns_sub_u32 s{ty}, s{S_T0}, s{ty}")
    g.e(f"s_lshl_b32 s{S_T0}, s{S_XCD}, 4\ns_add_u32 s{dst}, s{dst}, s{S_T0}")
assert all((t*43) >> 8 == t//6 for t in range(128))
head_of(f"s{S_TILE}", S_KOFF, S_T1)
g.e(f"s_lshl_b32 s{S_KOFF}, s{S_KOFF}, 18\ns_mov_b32 s{S_VOFF}, s{S_KOFF}\ns_mov_b32 s{S_HNEXT}, 0")
for kind, n in (("K", 3), ("V", 2)):
    for it in range(n):
        pre, dd, post = dma_items(kind)
        g.e(pre[0]); g.e("s_nop 0")
        for x in dd: g.vmem(x, (kind, cnt[kind]))
        for x in post: g.e(x)
        cnt[kind] += 1
g.lab("L_tile")
head_of(f"s{S_TILE}", S_KCUR, S_T1)
g.e(f"s_mul_i32 s{S_T2}, s{S_KCUR}, {1312*512}")
g.e(f"s_lshl_b32 s{S_KCUR}, s{S_KCUR}, 18")
g.e(f"s_lshl_b32 s{S_T0}, s{S_T1}, 17\ns_cmp_eq_u32 s{S_T1}, 5\ns_cselect_b32 s{S_T0}, {1168*512}, s{S_T0}")
g.e(f"s_add_u32 s{S_T2}, s{S_T2}, s{S_T0}")
g.e(f"s_mov_b32 s{S_Q+2}, {256*512}\ns_cmp_ge_u32 s{S_T1}, 4\ns_cselect_b32 s{S_Q+2}, {144*512}, s{S_Q+2}\ns_cselect_b32 s{S_NB}, 1, 0")
g.e(f"s_mov_b32 s{S_O+2}, s{S_Q+2}")
g.e(f"s_add_u32 s{S_Q}, s{S_QP}, s{S_T2}\ns_addc_u32 s{S_Q+1}, s{S_QP+1}, 0")
g.e(f"s_add_u32 s{S_O}, s{S_OP}, s{S_T2}\ns_addc_u32 s{S_O+1}, s{S_OP+1}, 0")
g.e(f"s_add_u32 s{S_T2}, s{S_TILE}, 1")
head_of(f"s{S_T2}", S_HNEXT, S_T1)
g.e(f"s_lshl_b32 s{S_HNEXT}, s{S_HNEXT}, 18\ns_cmp_eq_u32 s{S_TILE}, 2\ns_cselect_b32 s{S_HNEXT}, 0x40004000, s{S_HNEXT}")
if len(NBS) > 1:
    g.e(f"s_cmp_eq_u32 s{S_NB}, 0\ns_cbranch_scc1 L_tile_4")
    if 2 in NBS:
        g.e(f"s_cmp_eq_u32 s{S_W}, 0\ns_cbranch_scc1 L_tile_3\ns_branch L_tile_2")
    else:
        g.e("s_branch L_tile_3")
save = (dict(cnt), dict(need), list(g.vm), list(g.lg))
for NB in NBS:
    cnt.update(save[0]); need.update(save[1]); g.vm = list(save[2]); g.lg = list(save[3])
    tile_code(NB)
g.lab("L_next")
g.e(f"s_add_u32 s{S_TILE}, s{S_TILE}, 1\ns_cmp_lt_u32 s{S_TILE}, 3\ns_cbranch_scc1 L_tile")
g.e("s_waitcnt vmcnt(0)")
g.lab("L_end")
g.e("s_endpgm")
for (NB, buf) in list(rare_sites.keys()):
    rare_block(NB, buf)
g.raw('.section .rodata,"a"\n.p2align 6')
g.raw(f".amdhsa_kernel {KNAME}")
g.raw("  .amdhsa_next_free_vgpr 512\n  .amdhsa_next_free_sgpr 102\n  .amdhsa_accum_offset 256\n  .amdhsa_group_segment_fixed_size 0\n  .amdhsa_kernarg_size 48\n  .amdhsa_user_sgpr_count 2\n  .amdhsa_user_sgpr_kernarg_segment_ptr 1\n  .amdhsa_system_sgpr_workgroup_id_x 1\n.end_amdhsa_kernel")
print("\n".join(g.o))
```

```python
import sys, argparse, struct, copy
ap = argparse.ArgumentParser()
ap.add_argument("--nbs", default="4,3,2")
ap.add_argument("--stamps", type=int, default=0)
ap.add_argument("--qnt", default="")
ap.add_argument("--kvnt", default="")
ap.add_argument("--ont", default="")
ap.add_argument("--thresh", type=float, default=float(2**20))
ap.add_argument("--vspace", type=int, default=4)
ap.add_argument("--pstamp", type=int, default=0)
ap.add_argument("--nostore", type=int, default=0)
ap.add_argument("--noq", type=int, default=0)
ap.add_argument("--nopf", type=int, default=0)
ap.add_argument("--wspace", type=int, default=2)
ap.add_argument("--cap3", type=float, default=2.2)
ap.add_argument("--cap2", type=float, default=3.0)
ap.add_argument("--q2in", type=int, default=0)
ap.add_argument("--sspace", type=int, default=10)
ap.add_argument("--latebar", type=int, default=0)
ap.add_argument("--dbg", default="")
ap.add_argument("--noalign", type=int, default=0)
args = ap.parse_args()
if args.pstamp: args.stamps = 1

KNAME = "standalone__mha_softmax__near_ridge_kernel"
def f2u(f): return struct.unpack("<I", struct.pack("<f", f))[0]
def pol(p): return (" " + p) if p else ""

def Qr(qb, t): b = (qb*8+t)*4; return f"a[{b}:{b+3}]"
def Fr(i): b = 128+4*(i % 4); return f"a[{b}:{b+3}]"
def Fh(i, h): b = 128+4*(i % 4)+2*h; return f"a[{b}:{b+1}]"
NVD = 9
V_S = 48; V_O = 112
def Sreg(buf, qb, e): return V_S + buf*32 + qb*8 + e
def Sq(buf, qb, kb): b = Sreg(buf, qb, kb*4); return f"v[{b}:{b+3}]"
def Oloc(qb, d):
    if d < NVD: return ("v", V_O + (qb*NVD+d)*4)
    return ("a", 144 + (qb*(16-NVD)+d-NVD)*4)
def Oq(qb, d): k, b = Oloc(qb, d); return f"{k}[{b}:{b+3}]"
PK = [V_O + q*NVD*4 for q in range(4)]
V_KA = 1; V_VA = 5; V_DMA = 13
V_MC = 14; V_L = 18; V_LT = 22
V_QD = 26
V_QR = 27
V_OW = 28
V_OS = 29
V_T = 30
V_X = 32
V_LIN = 0
S_Q, S_K, S_V, S_O, S_QN = 8, 12, 16, 20, 64
S_C = 24; S_TH = 25
S_KOFF = 26; S_VOFF = 27; S_HNEXT = 28; S_KCUR = 29
S_W4K = 30; S_4K = 31
S_LOOP = 36; S_TILE = 37; S_W = 38; S_RET = 39
S_T0, S_T1, S_T2, S_SLOT = 40, 41, 42, 43
S_QP = 44; S_OP = 46
S_XR = 52; S_YR = 53
S_STG = 54
S_QM = 55
S_WS = 56; S_ST = 60
S_QS = 68
S_T3 = 69
S_PAR = 72
S_OS = 70; S_OS2 = 71
LDS_K = 0; LDS_V = 32768; SLOT = 16384
LDS_STG = 65536; STG_W = 24576
LDS_TOTAL = 163840
QBROW = 64*512

class Op:
    def __init__(s, kind, txt, deps=(), earliest=0, tag=None):
        s.kind = kind; s.txt = txt; s.deps = list(deps); s.idx = None; s.earliest = earliest; s.tag = tag; s.nlg = None; s.space = 0
    @property
    def cost(s): return 2 if s.kind in ("e", "m", "w") else 1
def V(txt, deps=(), earliest=0): return Op("v", txt, deps, earliest)
def E(txt, deps=(), earliest=0): return Op("e", txt, deps, earliest)
def S(txt, deps=(), earliest=0): return Op("s", txt, deps, earliest)
def L(txt, tag, deps=(), earliest=0): return Op("l", txt, deps, earliest, tag)
def W(txt, tag, deps=(), earliest=0): return Op("w", txt, deps, earliest, tag)
def M(txt, tag, deps=(), earliest=0): return Op("m", txt, deps, earliest, tag)
def WL(tag, deps=(), earliest=0): return Op("s", ("wlg", tag), deps, earliest)
def WV(tag, deps=(), earliest=0): return Op("s", ("wvm", tag), deps, earliest)
class Mark:
    def __init__(s): s.idx = None

class G:
    def __init__(s):
        s.o = []; s.n = 0; s.lg = []; s.vm = [[]]; s.lastv = -100; s.exposed = 0
    def c(s, t): s.o.append("; " + t)
    def lab(s, t): s.o.append(t + ":")
    def raw(s, t): s.o.append(t)
    def e(s, t):
        for x in t.split("\n"):
            x = x.strip()
            if not x: continue
            if x.endswith(":"): s.o.append(x); continue
            s.o.append("    " + x)
            if x.startswith("s_nop"): s.n += int(x.split()[1]) + 1
            else: s.n += 1
    def ds(s, t, tag): s.e(t); s.lg.append(tag)
    def vmem(s, t, tag):
        s.e(t)
        for q in s.vm: q.append(tag)
    @staticmethod
    def _cnt(q, tag):
        idx = [i for i, x in enumerate(q) if x == tag]
        return None if not idx else len(q) - 1 - idx[-1]
    def wait_lg(s, tag):
        n = s._cnt(s.lg, tag)
        if n is None: return False
        n = min(n, 15)
        s.e(f"s_waitcnt lgkmcnt({n})"); s.lg = s.lg[len(s.lg)-n:] if n else []
        return True
    def wait_vm(s, tag):
        ns = [x for x in (s._cnt(q, tag) for q in s.vm) if x is not None]
        if not ns: return False
        n = min(min(ns), 63)
        s.e(f"s_waitcnt vmcnt({n})")
        new = []
        for q in s.vm:
            q = q[max(0, len(q)-n):] if n else []
            if q not in new: new.append(q)
        s.vm = new
        return True
    def ready(s, op, gap):
        if gap < op.earliest: return False
        if op.nlg is not None and gap < 10**9 and op.nlg in s.lg: return False
        for d, ws in op.deps:
            if d.idx is None or s.n - d.idx - 1 < ws: return False
        return True
    def emit(s, op):
        if op.nlg is not None: s.wait_lg(op.nlg)
        op.idx = s.n
        if isinstance(op.txt, tuple):
            if op.txt[0] == "wlg": r = s.wait_lg(op.txt[1])
            else: r = s.wait_vm(op.txt[1]() if callable(op.txt[1]) else op.txt[1])
            if not r: op.idx = s.n - 1
            return r
        if op.kind in ("l", "w"): s.ds(op.txt, op.tag)
        elif op.kind == "m": s.vmem(op.txt, op.tag)
        else: s.e(op.txt)
        return True
    def fillv(s, q, slots, gap):
        while slots > 0 and q:
            pick = None
            win = q[:28]
            if slots >= 2:
                for op in win:
                    if op.cost == 2 and s.ready(op, gap): pick = op; break
            if pick is None:
                for op in win:
                    if op.cost == 1 and s.ready(op, gap): pick = op; break
            if pick is None: break
            q.remove(pick); s.emit(pick); slots -= pick.cost
        return slots
    def drain(s, vq=None, sq=None, mqs=(), pace=0):
        vq = vq if vq is not None else []; sq = sq if sq is not None else []
        n0 = s.n; lastm = -10**9
        while vq or sq or any(mqs):
            prog = False
            for q in list(mqs) + [sq]:
                while q and s.ready(q[0], 10**9):
                    if q[0].kind in ("m", "w") and vq and s.n - lastm < pace: break
                    if q[0].kind in ("m", "w"): lastm = s.n
                    s.emit(q.pop(0)); prog = True
            for op in vq[:28]:
                if s.ready(op, 10**9):
                    vq.remove(op); s.emit(op); prog = True; break
            if not prog: s.e("s_nop 0")
            assert s.n - n0 < 20000, "drain stuck"
        s.exposed += s.n - n0
    def snapshot(s): return (len(s.o), s.n, list(s.lg), copy.deepcopy(s.vm), dict(cnt), dict(need), copy.deepcopy(rare_sites), s.exposed)
    def restore(s, k):
        del s.o[k[0]:]; s.n = k[1]; s.lg = list(k[2]); s.vm = copy.deepcopy(k[3]); cnt.update(k[4]); need.update(k[5])
        rare_sites.clear(); rare_sites.update(copy.deepcopy(k[6])); s.exposed = k[7]

g = G()
cnt = {"K": 0, "V": 0}
need = {"K": 0, "V": 0}
rare_sites = {}

def stamp(i):
    if not args.stamps: return
    g.e(f"s_memtime s[{S_ST}:{S_ST+1}]\ns_memrealtime s[{S_ST+2}:{S_ST+3}]\ns_waitcnt lgkmcnt(0)")
    g.lg = []
    for k in range(4): g.e(f"v_mov_b32 v{V_X+8+k}, s{S_ST+k}")
    g.e(f"s_lshl_b32 s{S_T0}, s2, 2\ns_add_u32 s{S_T0}, s{S_T0}, s{S_W}\ns_lshl_b32 s{S_T0}, s{S_T0}, 9")
    g.e(f"s_mul_i32 s{S_T1}, s{S_TILE}, 128\ns_add_u32 s{S_T0}, s{S_T0}, s{S_T1}\ns_add_u32 s{S_T0}, s{S_T0}, {i*16}")
    g.e(f"v_mov_b32 v{V_X+12}, 0")
    g.vmem(f"buffer_store_dwordx4 v[{V_X+8}:{V_X+11}], v{V_X+12}, s[{S_WS}:{S_WS+3}], s{S_T0} offen", "stamp")
    g.e("s_nop 1")

def pstamp():
    if not args.pstamp: return
    g.e(f"s_mov_b32 m0, s90\ns_add_u32 s90, s90, 1\nv_writelane_b32 v{V_T+1}, s88, m0\ns_memtime s[88:89]")
def pflush():
    if not args.pstamp: return
    pstamp(); g.e("s_waitcnt lgkmcnt(0)"); g.lg = []; pstamp()
    g.e(f"s_lshl_b32 s{S_T0}, s2, 2\ns_add_u32 s{S_T0}, s{S_T0}, s{S_W}\ns_lshl_b32 s{S_T0}, s{S_T0}, 2\ns_add_u32 s{S_T0}, s{S_T0}, s{S_TILE}\ns_lshl_b32 s{S_T0}, s{S_T0}, 8\ns_add_u32 s{S_T0}, s{S_T0}, 0x80000")
    g.e(f"v_mbcnt_lo_u32_b32 v{V_X+12}, -1, 0\nv_mbcnt_hi_u32_b32 v{V_X+12}, -1, v{V_X+12}\nv_lshlrev_b32 v{V_X+12}, 2, v{V_X+12}")
    g.vmem(f"buffer_store_dword v{V_T+1}, v{V_X+12}, s[{S_WS}:{S_WS+3}], s{S_T0} offen", "stamp")
    g.e("s_mov_b32 s90, 0")

def frag_reads(kind, i, par):
    if kind == "QK":
        kb, t = i // 8, i % 8
        return [(f"ds_read_b128 {Fr(i)}, v{V_KA + t % 4} offset:{par*SLOT + kb*2048 + (t//4)*256}", ("F", i % 4))]
    return [(f"ds_read_b64_tr_b16 {Fh(i, kb)}, v{V_VA + i % 8} offset:{par*SLOT + kb*2048 + (i//8)*256}", ("F", i % 4)) for kb in range(2)]

def softmax_ops(NB, buf, mcdeps=None, ltdeps=None, sdeps=None, check=True):
    ops = []; last = []
    for qb in range(NB):
        F = []; X = []
        for e in range(8):
            r = Sreg(buf, qb, e)
            deps = [(mcdeps[qb], 1)] if mcdeps else []
            if sdeps: deps.append((sdeps[e//4], 8))
            F.append(V(f"v_fma_f32 v{r}, v{r}, s{S_C}, -v{V_MC+qb}", deps))
            X.append(E(f"v_exp_f32 v{r}, v{r}", [(F[e], 1)]))
        A = []; lt = V_LT + qb
        r = lambda e: Sreg(buf, qb, e)
        d0 = [(X[0], 1), (X[1], 1)] + ([(ltdeps[qb], 0)] if ltdeps else [])
        A.append(V(f"v_add_f32 v{lt}, v{r(0)}, v{r(1)}", d0))
        for e in range(2, 8):
            A.append(V(f"v_add_f32 v{lt}, v{lt}, v{r(e)}", [(X[e], 1), (A[-1], 1)]))
        C = []
        add_of = lambda e: A[0] if e < 2 else A[e-1]
        for k in range(4):
            deps = [(X[2*k], 1), (X[2*k+1], 1), (add_of(k), 0)]
            if k > 0: deps.append((C[k-1], 0))
            C.append(V(f"v_cvt_pk_bf16_f32 v{r(k)}, v{r(2*k)}, v{r(2*k+1)}", deps))
        ops += F[0:4] + [X[0], X[1]] + F[4:8] + [X[2], X[3], A[0], X[4], A[1], C[0], X[5], A[2], C[1], X[6], A[3], X[7], A[4], C[2], A[5], A[6], C[3]]
        last.append((A[-1], C[-1]))
    cmp_op = None
    if check:
        t = V_T
        lts = [f"v{V_LT+q}" for q in range(NB)]
        deps = [(a, 1) for a, _ in last]
        if NB == 4:
            m1 = V(f"v_max3_f32 v{t}, {lts[0]}, {lts[1]}, {lts[2]}", deps[:3])
            mm = V(f"v_max_f32 v{t}, v{t}, {lts[3]}", [(m1, 1), deps[3]])
            ops += [m1, mm]
        elif NB == 3:
            mm = V(f"v_max3_f32 v{t}, {lts[0]}, {lts[1]}, {lts[2]}", deps); ops.append(mm)
        else:
            mm = V(f"v_max_f32 v{t}, {lts[0]}, {lts[1]}", deps); ops.append(mm)
        cmp_op = V(f"v_cmp_nge_f32 vcc, s{S_TH}, v{t}", [(mm, 1)] + [(c, 0) for _, c in last])
        ops.append(cmp_op)
    return ops, last, cmp_op

def xlane(opname, reg, tmp, first_dep):
    ops = []; prev = first_dep
    for sw in ("v_permlane32_swap_b32", "v_permlane16_swap_b32"):
        mv = V(f"v_mov_b32 v{tmp}, v{reg}", [(prev, 1)])
        p = E(f"{sw} v{reg}, v{tmp}", [(mv, 2), (prev, 2)])
        m = V(f"{opname} v{reg}, v{reg}, v{tmp}", [(p, 1)])
        ops += [mv, p, m]; prev = m
    return ops

def interleave(lists):
    out = []
    for k in range(max(len(x) for x in lists)):
        for x in lists:
            if k < len(x): out.append(x[k])
    return out

def max_ops(NB, buf, dst, sdeps=None):
    allops = []; last = []
    d0 = [(sdeps[0], 8)] if sdeps else []
    d1 = [(sdeps[1], 8)] if sdeps else []
    for qb in range(NB):
        r = lambda e: Sreg(buf, qb, e)
        t = dst + qb
        a = V(f"v_max3_f32 v{t}, v{r(0)}, v{r(1)}, v{r(2)}", d0)
        b = V(f"v_max3_f32 v{t}, v{t}, v{r(3)}, v{r(4)}", [(a, 1)] + d1)
        c = V(f"v_max3_f32 v{t}, v{t}, v{r(5)}, v{r(6)}", [(b, 1)])
        d = V(f"v_max_f32 v{t}, v{t}, v{r(7)}", [(c, 1)])
        x = xlane("v_max_f32", t, V_X + 8 + qb, d)
        allops.append([a, b, c, d] + x); last.append(x[-1])
    return interleave(allops), last

def kv_dma(kind):
    off, srd, base = (S_KOFF, S_K, LDS_K) if kind == "K" else (S_VOFF, S_V, LDS_V)
    par = cnt[kind] & 1
    m0 = S(f"s_add_u32 m0, s{S_W4K}, {base + par*SLOT}")
    tag = (kind, cnt[kind]); cnt[kind] += 1
    d = [M(f"buffer_load_dwordx4 v{V_DMA}, s[{srd}:{srd+3}], s{off} offen offset:{i*1024}{pol(args.kvnt)} lds", tag, [(m0, 1)]) for i in range(4)]
    post = [S(f"s_add_u32 s{off}, s{off}, {SLOT}", [(d[-1], 0)]), S(f"s_and_b32 s{S_T0}, s{off}, 0x3ffff"), S(f"s_cselect_b32 s{off}, s{off}, s{S_HNEXT}")]
    return m0, d, post

def phase(NB, kind, buf, nxt, vq, dma, first=False, xs=None, xm=None, branch=None, drain_v=False, marks=None, keep=None, late=False):
    n = 16 * NB
    pstamp()
    late = late or args.latebar == 1 or (args.latebar == 2 and NB < 4)
    fsc = [None]*n; fld = [[] for _ in range(n)]
    nk = "K" if nxt == "QK" else "V"
    npar = need[nk] & 1
    for i in range(16):
        j = i + 3
        rd = frag_reads(kind, j, buf) if j < 16 else frag_reads(nxt, j - 16, npar)
        for k, it in enumerate(rd): fld[NB*i + k].append(it)
        fsc[NB*i + NB - 1] = ("F", (i+1) % 4)
    wv = WV((nk, need[nk])); need[nk] += 1
    bar = S("s_barrier")
    m0, d, post = kv_dma(dma)
    lateq = []
    if late:
        bar2 = S("s_barrier"); lateq = [wv, bar2]
        sq = [bar, m0] + post + list(xs or [])
    else:
        sq = [wv, bar, m0] + post + list(xs or [])
    mq = list(d)
    xv = []; xms = []; sq2 = []
    if xm: sq2, xms, xv = xm(d[-1]); sq2 = list(sq2)
    if branch: sq.append(S(f"s_cbranch_vccnz {branch[1]}\n{branch[2]}:", [(branch[0], 1)] + [(q[-1], 1) for q in xms if q] + [(o, 0) for o in sq2[-1:]]))
    mk = marks if marks is not None else {}
    last = {"m": -100, "w": -100, "st": -100}
    if keep is not None and "last" in keep: last = keep["last"]
    rate = {4: 2.0, 3: args.cap3, 2: args.cap2}[NB]
    vsp = {4: args.vspace, 3: args.vspace, 2: 3}[NB]
    credit = 0.0
    def in_chain():
        return bool(sq) and isinstance(sq[0].txt, str) and (sq[0].txt.startswith("s_cselect") or sq[0].txt.startswith("s_addc"))
    tail_scc = [False]
    def scalar(x):
        while True:
            if lateq and x >= NB*13 - 2*NB:
                if g.emit(lateq.pop(0)): return True
                continue
            if sq and g.ready(sq[0], x):
                op = sq.pop(0)
                if isinstance(op.txt, str) and op.txt.startswith("s_cmp_lg"): tail_scc[0] = True
                if g.emit(op): return True
                continue
            if sq2 and not in_chain() and g.ready(sq2[0], x):
                assert not tail_scc[0] or not (isinstance(sq2[0].txt, str) and sq2[0].txt.startswith("s_add")), "scc clobber"
                if g.emit(sq2.pop(0)): return True
                continue
            return False
    for x in range(n):
        i, qb = x // NB, x % NB
        if x == NB*13:
            while bar.idx is None: g.emit(sq.pop(0))
            while lateq: g.emit(lateq.pop(0))
        key = (i // 8) if kind == "QK" else (qb, i)
        m = mk.setdefault(key, Mark())
        here = g.n
        if kind == "QK":
            kb, t = i // 8, i % 8
            C = "0" if t == 0 else Sq(buf, qb, kb)
            g.e(f"v_mfma_f32_16x16x32_bf16 {Sq(buf, qb, kb)}, {Fr(i)}, {Qr(qb, t)}, {C}")
            if t == 7 and qb == NB-1: m.idx = here
        else:
            C = "0" if first else Oq(qb, i)
            g.e(f"v_mfma_f32_16x16x32_bf16 {Oq(qb, i)}, {Fr(i)}, {Sq(buf, qb, 0)}, {C}")
            m.idx = here
        credit += rate - 2.0
        slots = 2 + int(credit + 1e-9)
        cap0 = slots
        whole = None
        if slots - len(fld[x]) >= 2:
            for q in [mq] + xms:
                if q and q[0].kind in ("m", "w") and g.ready(q[0], x):
                    o = q[0]
                    if o.kind == "m" and x - last["m"] < vsp: continue
                    if o.space and x - last["st"] < o.space: continue
                    heavy = o.kind == "w" or "store" in o.txt
                    if heavy and x - last["w"] < args.wspace: continue
                    if fsc[x] is not None and NB > 2 and o.kind == "m": continue
                    whole = q; break
        if fsc[x] is not None:
            g.wait_lg(fsc[x])
            rem = sum(1 for y in range(x+1, n) if fsc[y] is None)
            if len(sq) + len(sq2) > rem: scalar(x)
        elif whole is None or whole[0].kind == "w":
            scalar(x)
        for t, tag in fld[x]:
            g.ds(t, tag); slots -= 1
        if whole is not None:
            op = whole.pop(0)
            if op.kind == "m": last["m"] = x
            if op.kind == "w" or "store" in op.txt: last["w"] = x
            if op.space: last["st"] = x
            g.emit(op); slots -= 2
        elif not fld[x] or NB == 2:
            for q in xms:
                if slots > 0 and q and q[0].kind == "l" and g.ready(q[0], x):
                    g.emit(q.pop(0)); slots -= 1; break
        slots = g.fillv(xv, slots, x)
        slots = g.fillv(vq, slots, x)
        used = cap0 - slots
        if used > 2: credit -= used - 2
        credit = min(credit, 2.0)
    while in_chain(): g.emit(sq.pop(0))
    for q in xms + [sq2]:
        for o in q: o.earliest = 0
    if keep is not None and not drain_v:
        g.drain(xv, sq, [mq])
        keep["xms"] = xms; keep["sq2"] = sq2; keep["last"] = {k: v - n for k, v in last.items()}
    elif drain_v or branch:
        g.drain(xv + vq, sq, [mq, sq2] + xms, pace=6); del vq[:]
    else:
        assert not (tail_scc[0] and sq2)
        g.drain(xv, sq, [mq, sq2] + xms)
    return mk

def site(NB, buf, special=False):
    l = rare_sites.setdefault((NB, buf), [])
    k = len(l)
    st = (f"L_rs_{NB}_{buf}_{k}", f"L_rr_{NB}_{buf}_{k}", special)
    l.append(st)
    return st

def lane_id(r):
    g.e(f"v_mbcnt_lo_u32_b32 v{r}, -1, 0\nv_mbcnt_hi_u32_b32 v{r}, -1, v{r}")

def q_direct_voff(dst, tmp):
    lane_id(tmp)
    g.e(f"v_and_b32 v{dst}, 15, v{tmp}\nv_lshlrev_b32 v{dst}, 9, v{dst}\ns_lshl_b32 s{S_T3}, s{S_W}, 13\nv_add_u32 v{dst}, s{S_T3}, v{dst}")
    g.e(f"v_lshrrev_b32 v{tmp}, 4, v{tmp}\nv_lshlrev_b32 v{tmp}, 4, v{tmp}\nv_add_u32 v{dst}, v{dst}, v{tmp}")

def q_direct(srd, qbs, voff, tag=None):
    for qb in qbs:
        g.e(f"s_mov_b32 s{S_T3}, {qb*QBROW}")
        for t in range(8):
            x = f"buffer_load_dwordx4 {Qr(qb, t)}, v{voff}, s[{srd}:{srd+3}], s{S_T3} offen offset:{t*64}"
            if tag: g.vmem(x, tag)
            else: g.e(x)

def rare_block(NB, buf):
    Lb = f"L_rare_{NB}_{buf}"
    sites = rare_sites[(NB, buf)]
    spec = [k for k, s_ in enumerate(sites) if s_[2]]
    g.lab(Lb)
    g.c("slow path: recompute S from global K, true running max, rescale O and l, redo softmax")
    t0, t1, t2 = V_T+1, V_T, V_LT
    g.e("s_waitcnt vmcnt(0) lgkmcnt(0)")
    if spec:
        g.e(f"s_cmp_lg_u32 s{S_RET}, {spec[0]}\ns_cbranch_scc1 {Lb}_a")
        q_direct_voff(t1, t0)
        q_direct(S_Q, range(NB), t1)
        g.e("s_waitcnt vmcnt(0)")
        g.lab(f"{Lb}_a")
    lane_id(t0)
    g.e(f"v_lshrrev_b32 v{t1}, 4, v{t0}\nv_lshlrev_b32 v{t1}, 4, v{t1}")
    g.e(f"v_and_b32 v{t2}, 6, v{t0}\nv_lshlrev_b32 v{t2}, 11, v{t2}\nv_add_u32 v{t1}, v{t1}, v{t2}")
    g.e(f"v_and_b32 v{t2}, 8, v{t0}\nv_lshlrev_b32 v{t2}, 7, v{t2}\nv_add_u32 v{t1}, v{t1}, v{t2}")
    g.e(f"v_and_b32 v{t2}, 1, v{t0}\nv_lshlrev_b32 v{t2}, 9, v{t2}\nv_add_u32 v{t1}, v{t1}, v{t2}")
    for grp in range(4):
        for k in range(4):
            i = grp*4+k; kb, t = i//8, i % 8
            g.e(f"buffer_load_dwordx4 v[{V_X+4*k}:{V_X+4*k+3}], v{t1}, s[{S_K}:{S_K+3}], s{S_KCUR} offen offset:{kb*2048+t*64}")
        g.e("s_waitcnt vmcnt(0)")
        for k in range(4):
            i = grp*4+k; kb, t = i//8, i % 8
            for qb in range(NB):
                C = "0" if t == 0 else Sq(buf, qb, kb)
                g.e(f"v_mfma_f32_16x16x32_bf16 {Sq(buf, qb, kb)}, v[{V_X+4*k}:{V_X+4*k+3}], {Qr(qb, t)}, {C}")
        g.e("s_nop 7")
    g.e("s_nop 7")
    ops, last = max_ops(NB, buf, V_X)
    g.drain(ops)
    for txt in ("v_mul_f32 v{x}, s{c}, v{x}", "v_max_f32 v{x}, v{x}, v{m}", "v_sub_f32 v{f}, v{m}, v{x}", "v_exp_f32 v{f}, v{f}", "v_mov_b32 v{m}, v{x}", "v_mul_f32 v{l}, v{l}, v{f}"):
        for qb in range(NB): g.e(txt.format(x=V_X+qb, c=S_C, m=V_MC+qb, f=V_X+4+qb, l=V_L+qb))
    for qb in range(NB):
        f = V_X+4+qb
        for d in range(16):
            k, b = Oloc(qb, d)
            if k == "v":
                for r in range(4): g.e(f"v_mul_f32 v{b+r}, v{b+r}, v{f}")
            else:
                for r in range(4): g.e(f"v_accvgpr_read_b32 v{V_X+8+r}, a{b+r}")
                for r in range(4): g.e(f"v_mul_f32 v{V_X+8+r}, v{V_X+8+r}, v{f}")
                for r in range(4): g.e(f"v_accvgpr_write_b32 a{b+r}, v{V_X+8+r}")
    ops, last, _ = softmax_ops(NB, buf, check=False)
    g.drain(ops)
    if spec:
        g.e(f"s_cmp_lg_u32 s{S_RET}, {spec[0]}\ns_cbranch_scc1 {Lb}_b")
        q_direct_voff(V_T, V_T+1)
        q_direct(S_QN, range(4), V_T)
        g.e("s_waitcnt vmcnt(0)")
        g.lab(f"{Lb}_b")
    g.e("s_nop 1")
    for k, st in enumerate(sites[:-1]):
        g.e(f"s_cmp_eq_u32 s{S_RET}, {k}\ns_cbranch_scc1 {st[1]}")
    g.e(f"s_branch {sites[-1][1]}")
    for k, st in enumerate(sites):
        g.lab(st[0])
        g.e(f"s_mov_b32 s{S_RET}, {k}\ns_branch {Lb}")

def o_write_ops(xy, src, deps_by_d=None, tmpbase=None):
    xv = []; ws = []
    ad = [V_OW]
    for k in range(1, 4):
        xv.append(V(f"v_xor_b32 v{tmpbase+k-1}, {k << 5}, v{V_OW}")); ad.append(tmpbase+k-1)
    for d in range(16):
        deps = [(xv[d % 4 - 1], 0)] if d % 4 else []
        if deps_by_d: deps += deps_by_d[d]
        r = src(d)
        ws.append(W(f"ds_write_b64 v{ad[d % 4]}, v[{r}:{r+1}] offset:{xy*8192 + (d >> 2)*128}", ("OW", xy), deps))
    return xv, ws


uid = [0]
def os_addr(atmp, ks=(1, 2, 3)):
    xv = {}; ad = {0: V_OS}
    for n_, k in enumerate(ks):
        if k: xv[k] = V(f"v_xor_b32 v{atmp+n_}, {k << 5}, v{V_OS}"); ad[k] = atmp+n_
    return xv, ad
def o_rd_st(rdtxts, r, areg, adeps, i, soff, rdeps=()):
    uid[0] += 1; tag = ("OR", uid[0])
    a = [L(t, tag, list(rdeps)) for t in rdtxts]
    b = M(f"buffer_store_dwordx4 v[{r}:{r+3}], v{areg}, s[{S_O}:{S_O+3}], s{soff} offen offset:{i*1024}{pol(args.ont)}", "O", [(a[-1], 0)] + list(adeps))
    b.nlg = tag
    return a, b

def q_dma_ops(idx, m0op, soff, tag, tmp, deps=()):
    xv = []; xm = []
    for k, i in enumerate(idx):
        if i:
            x = V(f"v_xor_b32 v{tmp+k}, {i << 6}, v{V_QD}", list(deps)); xv.append(x); a = tmp+k; dd = [(x, 0)]
        else: a = V_QD; dd = []
        xm.append(M(f"buffer_load_dwordx4 v{a}, s[{S_QN}:{S_QN+3}], s{soff} offen offset:{i*1024}{pol(args.qnt)} lds", tag, dd + [(m0op, 1)]))
    return xm, xv

def q_read_ops(qbs, tmp, tag, deps=()):
    xv = []; ad = [V_QR]
    for k in range(1, 4):
        xv.append(V(f"v_xor_b32 v{tmp+k-1}, {k << 6}, v{V_QR}")); ad.append(tmp+k-1)
    xm = []
    for xy, qb in enumerate(qbs):
        for t in range(8):
            xm.append(L(f"ds_read_b128 {Qr(qb, t)}, v{ad[t % 4]} offset:{xy*8192 + (t//4)*256}", tag, list(deps) + ([(xv[t % 4 - 1], 0)] if t % 4 else [])))
    return xm, xv

def q_block_dma(qbs, tag, lastdma, nlg=None):
    xs = []; xm = []; xv = []
    prev = lastdma
    ad = [V_QD]
    for k in range(1, 4):
        xv.append(V(f"v_xor_b32 v{V_X+4+k}, {k << 6}, v{V_QD}")); ad.append(V_X+4+k)
    for xy, qb in enumerate(qbs):
        for h in range(2):
            a = S(f"s_add_u32 m0, s{S_STG}, {xy*8192 + h*4096}", [(prev, 0)] if prev else [])
            b = S(f"s_mov_b32 s{S_QS}, {qb*QBROW + h*4096}")
            xs += [a, b]
            for i in range(4):
                o = M(f"buffer_load_dwordx4 v{ad[i]}, s[{S_QN}:{S_QN+3}], s{S_QS} offen offset:{i*1024}{pol(args.qnt)} lds", tag, [(a, 1), (b, 0)] + ([(xv[i-1], 0)] if i else []))
                o.nlg = nlg
                xm.append(o); prev = o
    return xs, xm, xv

def pack_task(qb, d, dst, tmp, deps, pk):
    k, b = Oloc(qb, d)
    ops = []
    l = V_L + qb
    if k == "a":
        rd = [V(f"v_accvgpr_read_b32 v{tmp+r}, a{b+r}", deps) for r in range(4)]
        ops += rd; b = tmp; dd = [[(rd[r], 1)] for r in range(4)]
    else: dd = [list(deps) for r in range(4)]
    if pk:
        lp = l & ~1
        sel = "op_sel_hi:[1,0]" if l % 2 == 0 else "op_sel:[0,1] op_sel_hi:[1,1]"
        mu = [V(f"v_pk_mul_f32 v[{b+2*h}:{b+2*h+1}], v[{b+2*h}:{b+2*h+1}], v[{lp}:{lp+1}] {sel}", dd[2*h] + dd[2*h+1]) for h in range(2)]
        md = [[(mu[0], 1)], [(mu[1], 1)]]
    else:
        mu = [V(f"v_mul_f32 v{b+r}, v{b+r}, v{l}", dd[r]) for r in range(4)]
        md = [[(mu[0], 1), (mu[1], 1)], [(mu[2], 1), (mu[3], 1)]]
    ops += mu
    c0 = V(f"v_cvt_pk_bf16_f32 v{dst}, v{b}, v{b+1}", md[0])
    c1 = V(f"v_cvt_pk_bf16_f32 v{dst+1}, v{b+2}, v{b+3}", md[1] + [(c0, 0)])
    return ops + [c0, c1]

def rel(vm, sign=-1): return [[(x[0], x[1]+sign*cnt[x[0]]) if isinstance(x, tuple) and x[0] in cnt else x for x in q] for q in vm]
def merge(a, b):
    out = [list(q) for q in a]
    for q in b:
        if q not in out: out.append(list(q))
    return out

def r16_voff_ops(dst, tmp, store):
    o = [V(f"v_mbcnt_lo_u32_b32 v{tmp}, -1, 0")]
    def ch(t): o.append(V(t, [(o[-1], 1)]))
    ch(f"v_mbcnt_hi_u32_b32 v{tmp}, -1, v{tmp}")
    ch(f"v_and_b32 v{dst}, 15, v{tmp}")
    ch(f"v_lshl_add_u32 v{dst}, v{dst}, 8, s{S_W4K}")
    if store:
        ch(f"v_and_or_b32 v{dst}, v{tmp}, 16, v{dst}")
        ch(f"v_lshrrev_b32 v{tmp}, 2, v{tmp}")
        ch(f"v_and_or_b32 v{dst}, v{tmp}, 8, v{dst}")
    else:
        ch(f"v_lshrrev_b32 v{tmp}, 1, v{tmp}")
        ch(f"v_and_or_b32 v{dst}, v{tmp}, 24, v{dst}")
    ch(f"v_lshlrev_b32 v{dst}, 1, v{dst}")
    return o

def prev_output_ops():
    xv, wr = o_write_ops(0, lambda d: PK[0]+2*d, tmpbase=V_X)
    for b in (1, 2):
        _, w = o_write_ops(b, lambda d: PK[b]+2*d, tmpbase=V_X)
        for o in w: o.deps = []
        wr += w
    av = r16_voff_ops(V_X+4, V_X+5, True)
    st = []
    for u in range(8):
        r = PK[3] + 4*u
        o = M(f"buffer_store_dwordx4 v[{r}:{r+3}], v{V_X+4}, s[{S_O}:{S_O+3}], s{S_XR} offen offset:{u*64}{pol(args.ont)}", "O", [(av[-1], 0)])
        o.space = 14; st.append(o)
    return xv + av, wr, st

def loop(name, ntrip, body, q, cmp_op):
    g.raw(".p2align 3")
    g.lab(name)
    snap = g.snapshot()
    names0 = [o.txt for o in q]
    def run(q, c):
        q, c = body(q, c)
        g.e(f"s_cbranch_scc1 {name}")
        return q, c
    qa, ca = run(*copy.deepcopy((q, cmp_op)))
    assert [o.txt for o in qa] == names0, "softmax split differs"
    assert g.lg == snap[2], (g.lg, snap[2])
    e1 = rel(g.vm)
    qa, ca = run(qa, ca)
    e2 = rel(g.vm)
    g.restore(snap)
    g.vm = merge(merge(g.vm, rel(e1, +1)), rel(e2, +1))
    q, cmp_op = run(q, cmp_op)
    assert [o.txt for o in q] == names0
    return q, cmp_op

def tile_code(NB):
    g.lab(f"L_tile_{NB}")
    if not args.pstamp: stamp(1)
    xva, wr, st = prev_output_ops()
    for o in st: o.space = 14*NB//4
    if "s" in args.dbg: st = []
    if "w" in args.dbg: wr = []
    zl = [V(f"v_mov_b32 v{V_L+q}, 0") for q in range(NB)]
    keep = {}
    mk0 = phase(NB, "QK", 0, "QK", zl, "V", xm=lambda ld: ([], [st, wr], xva), keep=keep)
    g.drain(zl)
    mops, mlast = max_ops(NB, 0, V_MC, mk0)
    mul = [V(f"v_mul_f32 v{V_MC+q}, s{S_C}, v{V_MC+q}", [(mlast[q], 1)]) for q in range(NB)]
    sops, last, _ = softmax_ops(NB, 0, mcdeps=mul, check=False)
    q = mops + mul + sops
    mk = phase(NB, "QK", 1, "PV", q, "K", xm=lambda ld: ([], keep["xms"], []), drain_v=True, keep=keep)
    g.e("s_nop 1")
    kc = lambda: S(f"s_add_u32 s{S_KCUR}, s{S_KCUR}, {SLOT}")
    def sm(buf, mk):
        la = [V(f"v_add_f32 v{V_L+q}, v{V_L+q}, v{V_LT+q}") for q in range(NB)]
        sops, last, cmp_op = softmax_ops(NB, buf, ltdeps=la, sdeps=mk)
        return la + sops, cmp_op
    q, cmp_op = sm(1, mk)
    phase(NB, "PV", 0, "QK", q, "K", first=True, xs=[kc(), S(f"s_mov_b32 s{S_QS}, 0"), S(f"s_mov_b32 s{S_QM}, s{S_STG}")])
    def iteration(j, q, cmp_op, xq=None, xp=None, xs=(), nxt="QK", keep=None):
        buf = j & 1
        st = site(NB, buf)
        mk = phase(NB, "QK", 1-buf, "PV", q, "V", xm=xq, branch=(cmp_op, st[0], st[1]))
        g.e("s_nop 1") if g.n - cmp_op.idx < 4 else None
        q, cmp_op = sm(1-buf, mk)
        phase(NB, "PV", buf, nxt, q, "K", xm=xp, xs=[kc()] + list(xs), keep=keep)
        return q, cmp_op
    def fl(par):
        def f(ld):
            xa = V(f"v_xor_b32 v{V_X+8}, 32, v{V_OS}")
            rd = []; st = []
            for k in range(2):
                r = V_X + 4*k; i = 2*par + k
                t = f"ds_read2_b64 v[{r}:{r+3}], v{V_LIN} offset0:{128*k+1} offset1:{128*k}" if par == 0 else f"ds_read_b128 v[{r}:{r+3}], v{V_LIN} offset:{i*1024}"
                a, b = o_rd_st([t], r, V_X+8 if k else V_OS, [(xa, 0)] if k else [], i, S_QS)
                b.space = args.sspace*NB//4
                rd += a; st.append(b)
            m0 = S(f"s_mov_b32 m0, s{S_QM}", [(ld, 0)])
            xm, xv = q_dma_ops([2*par, 2*par+1], m0, S_QS, "QA", V_X+9)
            for k in range(2): xm[k].nlg = rd[k].tag; xm[k].deps.append((rd[k], 0))
            xv = [xa] + xv
            if par:
                xv.append(V(f"v_add_u32 v{V_LIN}, 4096, v{V_LIN}", [(rd[-1], 0)]))
                xv.append(V(f"v_xor_b32 v{V_OS}, 64, v{V_OS}", [(st[0], 0), (xa, 0)]))
            return [m0], [rd, [st[0], xm[0], st[1], xm[1]]], xv
        return f
    def body(q, c):
        q, c = iteration(1, q, c, xq=fl(0))
        upd = [S(f"s_add_u32 s{S_QM}, s{S_QM}, 4096"), S(f"s_and_b32 s{S_T1}, s{S_QS}, 4096"), S(f"s_cselect_b32 s{S_T1}, {QBROW-4096}, s{S_4K}"),
               S(f"s_add_u32 s{S_QS}, s{S_QS}, s{S_T1}"), S(f"s_cmp_lg_u32 s{S_QS}, {3*QBROW}")]
        return iteration(2, q, c, xq=fl(1), xs=upd)
    q, cmp_op = loop(f"L_loop_{NB}", 6, body, q, cmp_op)
    fin = [S(f"s_add_u32 s{S_O}, s{S_OP}, s{S_PAR+1}"), S(f"s_addc_u32 s{S_O+1}, s{S_OP+1}, 0"), S(f"s_mov_b32 s{S_O+2}, " + ("0" if args.nostore else f"s{S_PAR+2}"))]
    q, cmp_op = iteration(13, q, cmp_op, xq=lambda ld: ([], [], [V(f"v_subrev_u32 v{V_LIN}, {STG_W}, v{V_LIN}")]), xs=fin)
    def qsw(ld):
        wv = WV("QA")
        rm, rv = q_read_ops([0, 1, 2], V_X, "QR", [(wv, 0)])
        av = r16_voff_ops(V_X+4, V_X+5, False)
        lm = []
        for t in range(8):
            o = M(f"buffer_load_dwordx4 {Qr(3, t)}, v{V_X+4}, s[{S_QN}:{S_QN+3}], s{S_QS} offen offset:{t*64}", "QB", [(av[-1], 0)])
            o.space = 12*NB//4; lm.append(o)
        return [wv], [lm, rm], av + rv
    keep = {}
    q, cmp_op = iteration(14, q, cmp_op, xp=qsw, nxt="PV", keep=keep)
    pstamp()
    g.drain(q, keep["sq2"], keep["xms"], pace=24)
    st = site(NB, 1, True)
    g.e(f"s_nop 0\ns_cbranch_vccnz {st[0]}"); g.lab(st[1])
    la = [V(f"v_add_f32 v{V_L+q}, v{V_L+q}, v{V_LT+q}") for q in range(NB)]
    xs_ = []; rc = []
    for qb in range(NB):
        x = xlane("v_add_f32", V_L+qb, V_X+8+qb, la[qb])
        x.append(E(f"v_rcp_f32 v{V_L+qb}, v{V_L+qb}", [(x[-1], 1)])); rc.append(x[-1])
        xs_.append(x)
    lred = la + interleave(xs_)
    cand = [(qb, d) for d in range(NVD) for qb in range(NB)]
    book = [f"s_mov_b32 s{S_XR}, {3*QBROW if NB == 4 else 0x40000000}"]
    book += [f"s_mov_b64 s[{S_PAR+k}:{S_PAR+k+1}], s[{S_PAR+4+k}:{S_PAR+5+k}]" for k in range(0, 12, 2)]
    book += tile_setup()
    book += [f"s_add_u32 s{S_TILE}, s{S_TILE}, 1"] if not args.stamps else []
    def try_phase(k):
        mk = {(qb, d): Mark() for qb in range(NB) for d in range(16)}
        lr, rcs = copy.deepcopy((lred, rc))
        ops = list(lr); prevc = {}
        for qb, d in cand[:k]:
            t = pack_task(qb, d, PK[qb]+2*d, None, [(mk[(qb, d)], 8), (rcs[qb], 1)], False)
            if qb in prevc: t[-2].deps.append((prevc[qb], 0))
            prevc[qb] = t[-1]
            ops += t
        phase(NB, "PV", 1, "QK", ops, "V", xs=[S(r) for r in book], marks=mk)
        return ops, mk
    snap = g.snapshot()
    best = 0
    for k in range(len(cand), -1, -1):
        ops, mk = try_phase(k)
        g.restore(snap)
        if not ops: best = k; break
    ops, mk = try_phase(best)
    g.drain(ops)
    pstamp()
    if not args.pstamp: stamp(2)
    done = set(cand[:best])
    T4 = [V_S + 4*k for k in range(16)]
    tk = [0]
    def pack_block(qb):
        out = []; prev = None; cv = {}
        for d in range(16):
            if (qb, d) in done: continue
            tmp = T4[tk[0] % 16]; tk[0] += 1
            t = pack_task(qb, d, PK[qb]+2*d, tmp, [(mk[(qb, d)], 8)], True)
            if d in (1, 2) and prev: t[-2].deps.append((prev[-1], 0))
            out.append(t); prev = t; cv[d] = t[-2:]
        seq = []
        for k in range(0, len(out), 2): seq += interleave(out[k:k+2])
        if qb == 3:
            for u in range(8):
                r = PK[3] + 4*u
                deps = [(c, 2) for d in (2*u, 2*u+1) for c in cv.get(d, [])]
                seq.append(E(f"v_permlane16_swap_b32 v{r}, v{r+2}", deps))
                seq.append(E(f"v_permlane16_swap_b32 v{r+1}, v{r+3}", deps))
        return seq
    seq = []
    for qb in range(NB): seq += pack_block(qb)
    for a, b in zip(seq, seq[8:]): b.deps.append((a, 0))
    g.drain(seq)
    g.wait_vm("QB")
    g.e("s_waitcnt lgkmcnt(0)"); g.lg = []
    pflush()
    if not args.pstamp: stamp(3)
    if args.stamps: g.e(f"s_add_u32 s{S_TILE}, s{S_TILE}, 1")
    dispatch(NB == NBS[-1])

def tile_setup():
    return [f"s_mov_b32 s{S_KCUR}, s{S_PAR}", f"s_mov_b32 s{S_HNEXT}, s{S_PAR+4}",
            f"s_mov_b64 s[{S_Q}:{S_Q+1}], s[{S_QN}:{S_QN+1}]", f"s_mov_b32 s{S_Q+2}, s{S_QN+2}",
            f"s_add_u32 s{S_QN}, s{S_QP}, s{S_PAR+5}", f"s_addc_u32 s{S_QN+1}, s{S_QP+1}, 0",
            f"s_mov_b32 s{S_QN+2}, " + ("0" if args.noq else f"s{S_PAR+6}")]
def dispatch(fall):
    for NB in NBS:
        g.e(f"s_cmp_eq_u32 s{S_PAR+3}, {NB}\ns_cbranch_scc1 L_tile_{NB}")
    if not fall: g.e("s_branch L_done")

NBS = [int(x) for x in args.nbs.split(",")]
g.raw(f"; @launch grid=(256,1,1) block=(256,1,1) lds={LDS_TOTAL}")
g.raw('.amdgcn_target "amdgcn-amd-amdhsa--gfx950"\n.text')
g.raw(f".globl {KNAME}\n.p2align 8\n.type {KNAME},@function\n{KNAME}:")
g.e("s_cmp_ge_u32 s2, 256\ns_cbranch_scc1 L_end")
g.e(f"s_load_dwordx2 s[{S_QP}:{S_QP+1}], s[0:1], 0")
g.e(f"s_load_dwordx2 s[{S_K}:{S_K+1}], s[0:1], 8")
g.e(f"s_load_dwordx2 s[{S_V}:{S_V+1}], s[0:1], 16")
g.e(f"s_load_dwordx2 s[{S_OP}:{S_OP+1}], s[0:1], 24")
if args.stamps: g.e(f"s_load_dwordx2 s[{S_WS}:{S_WS+1}], s[0:1], 40")
g.e(f"v_lshrrev_b32 v{V_T}, 6, v0\nv_and_b32 v0, 63, v0")
g.e(f"v_readfirstlane_b32 s{S_W}, v{V_T}")
g.e(f"s_mov_b32 s{S_4K}, 4096\ns_mov_b32 s{S_TILE}, 0")
XCD, CU = S_T2, S_T3
g.e(f"s_and_b32 s{XCD}, s2, 7\ns_lshr_b32 s{CU}, s2, 3\ns_lshl_b32 s{XCD}, s{XCD}, 4")
assert all((t*43) >> 8 == t//6 for t in range(128))
def params(k):
    P = S_PAR + 4*k
    g.e(f"s_add_u32 s{S_T0}, s{CU}, {32*k}")
    g.e(f"s_mul_i32 s{P}, s{S_T0}, 43\ns_lshr_b32 s{P}, s{P}, 8")
    g.e(f"s_mul_i32 s{S_T1}, s{P}, 6\ns_sub_u32 s{S_T1}, s{S_T0}, s{S_T1}")
    g.e(f"s_add_u32 s{P}, s{P}, s{XCD}")
    g.e(f"s_mul_i32 s{P+1}, s{P}, {1312*512}\ns_lshl_b32 s{P}, s{P}, 18")
    g.e(f"s_lshl_b32 s{S_T0}, s{S_T1}, 17\ns_cmp_eq_u32 s{S_T1}, 5\ns_cselect_b32 s{S_T0}, {1168*512}, s{S_T0}")
    g.e(f"s_add_u32 s{P+1}, s{P+1}, s{S_T0}")
    g.e(f"s_mov_b32 s{P+2}, {256*512}\ns_cmp_ge_u32 s{S_T1}, 4\ns_cselect_b32 s{P+2}, {144*512}, s{P+2}\ns_cselect_b32 s{P+3}, s{S_YR}, 4")
small0 = 3 if 3 in NBS else 4
small1 = 2 if 2 in NBS else small0
g.e(f"s_cmp_eq_u32 s{S_W}, 0\ns_cselect_b32 s{S_YR}, {small0}, {small1}")
params(0)
a, b, c2, d = V_X, V_X+1, V_X+2, V_X+3
g.e(f"v_lshrrev_b32 v{a}, 5, v0")
g.e(f"s_lshl_b32 s{S_T0}, s{S_W}, 1\nv_add_u32 v{b}, s{S_T0}, v{a}\nv_lshlrev_b32 v{b}, 1, v{b}")
g.e(f"v_and_b32 v{c2}, 31, v0\nv_xor_b32 v{d}, v{c2}, v{b}\nv_lshlrev_b32 v{d}, 4, v{d}")
g.e(f"v_lshlrev_b32 v{b}, 9, v{a}\nv_add_u32 v{V_DMA}, v{b}, v{d}")
g.e(f"s_lshl_b32 s{S_W4K}, s{S_W}, 12\nv_add_u32 v{V_DMA}, s{S_W4K}, v{V_DMA}")
g.e(f"s_lshl_b32 s{S_T1}, s{S_W}, 13\nv_add_u32 v{b}, s{S_T1}, v{b}")
g.e(f"v_lshlrev_b32 v{d}, 1, v{a}\nv_xor_b32 v{d}, v{c2}, v{d}\nv_lshlrev_b32 v{d}, 4, v{d}\nv_add_u32 v{V_QD}, v{b}, v{d}")
g.e(f"v_xor_b32 v{d}, v{c2}, v{a}\nv_lshlrev_b32 v{d}, 4, v{d}\nv_add_u32 v{V_OS}, v{b}, v{d}")
g.e(f"s_mul_i32 s{S_STG}, s{S_W}, {STG_W}\ns_add_u32 s{S_STG}, s{S_STG}, {LDS_STG}")
g.e(f"s_mov_b32 s{S_KOFF}, s{S_PAR}\ns_mov_b32 s{S_VOFF}, s{S_PAR}\ns_mov_b32 s{S_HNEXT}, 0")
g.e("s_waitcnt lgkmcnt(0)")
for srd in (S_K, S_V):
    g.e(f"s_mov_b32 s{srd+2}, {128*512*512}\ns_mov_b32 s{srd+3}, 0x20000")
g.e(f"s_add_u32 s{S_QN}, s{S_QP}, s{S_PAR+1}\ns_addc_u32 s{S_QN+1}, s{S_QP+1}, 0\ns_mov_b32 s{S_QN+2}, s{S_PAR+2}\ns_mov_b32 s{S_QN+3}, 0x20000")
if args.stamps: g.e(f"s_mov_b32 s{S_WS+2}, 0x1000000\ns_mov_b32 s{S_WS+3}, 0x20000")
stamp(4)
def kv_now(kind):
    m0, dd, post = kv_dma(kind)
    g.drain(None, [m0] + post, [dd])
kv_now("K")
xs, xm, xv = q_block_dma([0, 1, 2], "QA", None)
g.drain(xv, xs, [xm])
kv_now("K"); kv_now("V")
g.e(f"s_mov_b32 s{S_OS}, s{CU}")
q_direct_voff(V_T, V_T+1)
q_direct(S_QN, [3], V_T, "QB")
g.e(f"s_mov_b32 s{CU}, s{S_OS}")
stamp(0)
params(1); params(2)
P3 = S_PAR + 12
g.e(f"s_mov_b32 s{P3}, 0x40004000\ns_mov_b32 s{P3+1}, 0\ns_mov_b32 s{P3+2}, 0\ns_mov_b32 s{P3+3}, 0")
g.e(f"s_mov_b32 s{S_C}, {f2u(1.4426950408889634/16):#x}\ns_mov_b32 s{S_TH}, {f2u(args.thresh):#x}")
g.e(f"s_mov_b32 s{S_Q+3}, 0x20000\ns_mov_b32 s{S_O}, s{S_OP}\ns_mov_b32 s{S_O+1}, s{S_OP+1}\ns_mov_b32 s{S_O+2}, 0\ns_mov_b32 s{S_O+3}, 0x20000")
if args.pstamp: g.e("s_mov_b32 s90, 0\ns_mov_b32 s88, 0")
g.e(f"s_mov_b32 s{S_XR}, 0")
for x in tile_setup(): g.e(x)
def rho512(dst, m, tmp):
    g.e(f"v_and_b32 v{dst}, 6, v{m}\nv_lshlrev_b32 v{dst}, 11, v{dst}")
    g.e(f"v_and_b32 v{tmp}, 8, v{m}\nv_lshlrev_b32 v{tmp}, 7, v{tmp}\nv_add_u32 v{dst}, v{dst}, v{tmp}")
    g.e(f"v_and_b32 v{tmp}, 1, v{m}\nv_lshlrev_b32 v{tmp}, 9, v{tmp}\nv_add_u32 v{dst}, v{dst}, v{tmp}")
g.e(f"v_and_b32 v{a}, 15, v0")
rho512(b, a, c2)
g.e(f"v_and_b32 v{c2}, 7, v0\nv_lshlrev_b32 v{c2}, 1, v{c2}")
g.e(f"v_lshrrev_b32 v{d}, 4, v0\nv_xor_b32 v{d}, v{d}, v{c2}")
g.e(f"v_lshlrev_b32 v{c2}, 4, v{d}")
g.e(f"v_add_u32 v{V_KA}, v{c2}, v{b}")
for t in range(1, 4): g.e(f"v_xor_b32 v{V_KA+t}, {t << 6}, v{V_KA}")
assert LDS_K == 0
g.e(f"v_lshlrev_b32 v{a}, 9, v{a}\nv_add_u32 v{a}, s{S_STG}, v{a}\nv_add_u32 v{V_QR}, v{a}, v{c2}")
g.e(f"v_and_b32 v{c2}, 3, v0\nv_lshlrev_b32 v{c2}, 1, v{c2}\nv_and_or_b32 v{c2}, v0, 8, v{c2}")
g.e(f"v_bfe_u32 v{d}, v0, 2, 1\nv_xor_b32 v{d}, 1, v{d}\nv_or_b32 v{c2}, v{c2}, v{d}")
g.e(f"v_lshrrev_b32 v{d}, 4, v0\nv_xor_b32 v{c2}, v{c2}, v{d}\nv_lshlrev_b32 v{c2}, 3, v{c2}\nv_add_u32 v{V_OW}, v{a}, v{c2}")
g.e(f"v_lshrrev_b32 v{a}, 2, v0")
rho512(b, a, c2)
g.e(f"v_and_b32 v{c2}, 3, v0\nv_lshlrev_b32 v{c2}, 3, v{c2}\nv_add_u32 v{b}, v{b}, v{c2}\nv_add_u32 v{b}, {LDS_V}, v{b}")
g.e(f"v_and_b32 v{c2}, 7, v{a}\nv_lshlrev_b32 v{c2}, 5, v{c2}\nv_add_u32 v{V_VA}, v{c2}, v{b}")
for dl in range(1, 8): g.e(f"v_xor_b32 v{V_VA+dl}, {dl << 5}, v{V_VA}")
g.e(f"v_lshlrev_b32 v0, 4, v0\nv_add_u32 v0, s{S_STG}, v0")
g.wait_vm("QA")
rm, rv = q_read_ops([0, 1, 2], V_X, "QR")
g.drain(rv, None, [rm])
need["K"] += 1
g.e("s_barrier")
for i in range(3):
    for t, tag in frag_reads("QK", i, 0): g.ds(t, tag)
g.wait_vm("QB")
g.e("s_waitcnt lgkmcnt(0)"); g.lg = []
if args.pstamp: stamp(1)
for NB in NBS[1:]:
    g.e(f"s_cmp_eq_u32 s{S_PAR+3}, {NB}\ns_cbranch_scc1 L_tile_{NB}")
snap = g.snapshot()
entry = rel(g.vm); nd0 = (need["K"]-cnt["K"], need["V"]-cnt["V"])
exits = []
for NB in NBS:
    tile_code(NB)
    assert nd0 == (need["K"]-cnt["K"], need["V"]-cnt["V"])
    exits.append(rel(g.vm)); g.restore(snap)
alts = entry
for e_ in exits: alts = merge(alts, e_)
c0, n0 = dict(cnt), dict(need)
for NB in NBS:
    cnt.update(c0); need.update(n0); g.vm = rel(alts, +1); g.lg = []
    ex0 = g.exposed
    tile_code(NB)
    assert not [x for x in g.lg if x[0] == "F"], g.lg
    print(f"NB={NB} exposed instrs {g.exposed-ex0}", file=sys.stderr)
g.lab("L_done")
g.lg = []
xva, wr, st = prev_output_ops()
g.drain(xva)
xv, ad = os_addr(V_X+12)
g.drain(list(xv.values()))
fifo = []
sts = list(st)
RBF = [V_S + 4*k for k in range(16)]
pend = []
for b in range(3):
    w = wr[16*b:16*b+16]
    for k in range(16):
        fifo.append(w[k])
        if k % 2 == 1 and pend: fifo.append(pend.pop(0))
        if k % 6 == 0 and sts: fifo.append(sts.pop(0))
    fifo += pend; pend = []
    for h in range(2):
        sr = [S_OS, S_OS2, S_T0, S_T1, S_T2, S_QS][2*b+h]
        g.e(f"s_mov_b32 s{sr}, {b*QBROW + h*4096}")
        for k in range(4):
            r = RBF[(b*8 + h*4 + k) % 16]; off = b*8192 + h*4096 + k*1024
            if k < 2: t = [f"ds_read_b64 v[{r}:{r+1}], v{V_LIN} offset:{off+8}", f"ds_read_b64 v[{r+2}:{r+3}], v{V_LIN} offset:{off}"]
            else: t = [f"ds_read_b128 v[{r}:{r+3}], v{V_LIN} offset:{off}"]
            a_, b_ = o_rd_st(t, r, ad[(k & 1) + 2*h], [], k, sr)
            fifo += a_; pend.append(b_)
fifo += pend + sts
g.drain(None, None, [fifo])
if args.stamps:
    g.e("s_waitcnt vmcnt(0)")
    stamp(0)
g.e("s_waitcnt vmcnt(0)")
g.lab("L_end")
g.e("s_endpgm")
for (NB, buf) in list(rare_sites.keys()):
    rare_block(NB, buf)
g.raw('.section .rodata,"a"\n.p2align 6')
g.raw(f".amdhsa_kernel {KNAME}")
g.raw("  .amdhsa_next_free_vgpr 512\n  .amdhsa_next_free_sgpr 102\n  .amdhsa_accum_offset 256\n  .amdhsa_group_segment_fixed_size 0\n  .amdhsa_kernarg_size 48\n  .amdhsa_user_sgpr_count 2\n  .amdhsa_user_sgpr_kernarg_segment_ptr 1\n  .amdhsa_system_sgpr_workgroup_id_x 1\n.end_amdhsa_kernel")
import align
print("\n".join(align.fix(g.o) if not args.noalign else g.o))
```
